```python
import torch

def _softmax(x, axis=-1):
    return torch.softmax(x, dim=axis)

def _gelu(x):
    return torch.nn.functional.gelu(x, approximate='tanh')

def _silu(x):
    return torch.nn.functional.silu(x)

def _sigmoid(x):
    return torch.sigmoid(x)

def _layernorm(x, axis=-1, eps=1e-05):
    m = x.mean(dim=axis, keepdim=True)
    v = x.var(dim=axis, keepdim=True, unbiased=False)
    return (x - m) / torch.sqrt(v + eps)

def _scatter_add(tgt, idx, src, axis=0):
    return tgt.clone().index_add_(axis, idx, src)

def _segment_sum(src, seg, n):
    out = torch.zeros((n,) + src.shape[1:], dtype=src.dtype)
    return out.index_add_(0, seg, src)

def _pad(x, pw):
    flat = tuple((v for pair in reversed(pw) for v in pair))
    return torch.nn.functional.pad(x, flat)
kernel_name = 'standalone__tree_speculative_verify_tree_attention_over_candidate_token_tree__decode'

def setup_inputs():

    _w = lambda a: (lambda t: t.to(torch.bfloat16) if t.is_floating_point() else t)(torch.as_tensor(a))
    B, Hq, Hkv, T, C, D = (1, 16, 8, 1, 16384, 256)
    tree_mask = torch.zeros((B, T, T), dtype=float)
    for b in range(B):
        parent = torch.zeros(T, dtype=torch.int64)
        for i in range(1, T):
            parent[i] = int(torch.randint(0, i, (1,)).item())
        for i in range(T):
            j = i
            tree_mask[b, i, j] = 1.0
            while j > 0:
                j = parent[j]
                tree_mask[b, i, j] = 1.0
    return {'q': _w((lambda *s: torch.randn(*s, dtype=torch.bfloat16) * 0.8)(B, Hq, T, D)), 'k_cache': _w((lambda *s: torch.randn(*s, dtype=torch.bfloat16) * 0.8)(B, Hkv, C, D)), 'v_cache': _w((lambda *s: torch.randn(*s, dtype=torch.bfloat16) * 0.05)(B, Hkv, C, D)), 'k_tree': _w((lambda *s: torch.randn(*s, dtype=torch.bfloat16) * 0.8)(B, Hkv, T, D)), 'v_tree': _w((lambda *s: torch.randn(*s, dtype=torch.bfloat16) * 0.05)(B, Hkv, T, D)), 'tree_mask': _w(tree_mask)}

def reference(q, k_cache, v_cache, k_tree, v_tree, tree_mask):
    B, Hq, T, D = q.shape
    Hkv, C = (k_cache.shape[1], k_cache.shape[2])
    rep = Hq // Hkv
    kc = (lambda x, n, axis: torch.repeat_interleave(x, n, dim=axis))(k_cache, rep, axis=1)
    vc = (lambda x, n, axis: torch.repeat_interleave(x, n, dim=axis))(v_cache, rep, axis=1)
    kt = (lambda x, n, axis: torch.repeat_interleave(x, n, dim=axis))(k_tree, rep, axis=1)
    vt = (lambda x, n, axis: torch.repeat_interleave(x, n, dim=axis))(v_tree, rep, axis=1)
    k = torch.concatenate([kc, kt], axis=2)
    v = torch.concatenate([vc, vt], axis=2)
    scale = D ** (-0.5)
    scores = torch.einsum('bhqd,bhkd->bhqk', q, k) * scale
    ctx_mask = torch.ones((B, 1, T, C), dtype=scores.dtype)
    tm = tree_mask[:, None, :, :].clone()
    full_mask = torch.concatenate([ctx_mask, tm], axis=-1)
    scores = scores + (1.0 - full_mask) * -1000000000.0
    p = _softmax(scores, axis=-1)
    return torch.einsum('bhqk,bhkd->bhqd', p, v)
```

```python
import sys, argparse, struct
KN = "standalone__tree_speculative_verify_tree_attention_over_candidate_token_tree__decode_kernel"
REF = "standalone__tree_speculative_verify_tree_attention_over_candidate_token_tree__decode.s.ref"
HDR = open(REF).read().split("; Override launch")[0]
def hexf(x): return "0x%08x" % struct.unpack("<I", struct.pack("<f", x))[0]
class A:
    def __init__(s): s.l = []
    def __call__(s, x):
        for ln in x.strip("\n").split("\n"):
            ln = ln.strip()
            s.l.append(ln if ln.endswith(":") else "    " + ln)
    def txt(s): return "\n".join(s.l) + "\n"
def vr(b, n=1): return f"v{b}" if n == 1 else f"v[{b}:{b+n-1}]"

def gen(NW=4, LA=2, LF="nt", stamps=False, tree=True):
    NT = 32 // NW
    TSTR = NW * 8192
    C_SCALE = 0.0625 * 1.4426950408889634
    a = A()
    sQ, sK, sV, sWS, sOUT, sDBG, sKT, sVT, sMK = 4, 8, 12, 16, 20, 24, 28, 32, 36
    sKV, sCH, sW, sC, sDES, sT0 = 40, 41, 42, 43, 44, 45
    sLK = 53
    sTO = 54
    sST = 64
    vL = 1
    vKD = 2
    vKR = 10
    vVO = 14
    vM = 16
    vA0, vA1 = 20, 24
    vB = [28, 32]
    vS = 36
    vT = 40
    vMc, vLs, vX0, vX1, vAl = 48, 49, 50, 51, 52
    vVX = 56
    vQ = 64
    vKF = 96
    vV = 128
    nvgpr = vV + 32 * LA
    acc_off = (nvgpr + 3) // 4 * 4
    lf = (" " + LF) if LF else ""
    nst = [0]
    def stamp():
        if stamps:
            a(f"s_memrealtime s[{sST + 2*nst[0]}:{sST + 2*nst[0] + 1}]"); nst[0] += 1
    L_O = 0
    L_ML = L_O + NW * 2048
    L_FL = L_ML + 2 * NW * 8
    L_KB = (L_FL + 16 + 1023) // 1024 * 1024
    LDS = L_KB + NW * LA * 8192
    L_K = 0
    a(f"""
s_cmp_ge_u32 s2, 256
s_cbranch_scc1 L_end
""")
    stamp()
    a(f"""
s_load_dwordx2 s[{sK}:{sK+1}], s[0:1], 8
s_load_dwordx2 s[{sQ}:{sQ+1}], s[0:1], 0
s_load_dwordx2 s[{sV}:{sV+1}], s[0:1], 16
v_lshrrev_b32 v{vT}, 6, v0
v_and_b32 v{vL}, 63, v0
s_and_b32 s{sKV}, s2, 7
v_readfirstlane_b32 s{sW}, v{vT}
s_lshr_b32 s{sCH}, s2, 3
s_load_dwordx2 s[{sKT}:{sKT+1}], s[0:1], 24
s_load_dwordx2 s[{sVT}:{sVT+1}], s[0:1], 32
s_load_dwordx2 s[{sMK}:{sMK+1}], s[0:1], 40
s_load_dwordx2 s[{sOUT}:{sOUT+1}], s[0:1], 48
s_load_dwordx2 s[{sDBG}:{sDBG+1}], s[0:1], 56
s_load_dwordx2 s[{sWS}:{sWS+1}], s[0:1], 64
s_mov_b32 s{sK+2}, 0x4000000
s_mov_b32 s{sK+3}, 0x20000
s_mov_b32 s{sQ+2}, 8192
s_mov_b32 s{sQ+3}, 0x20000
s_mov_b32 s{sV+2}, 0x4000000
s_mov_b32 s{sV+3}, 0x20000
s_lshl_b32 s{sT0}, s{sKV}, 23
s_lshl_b32 s{sT0+1}, s{sCH}, 18
s_add_u32 s{sT0}, s{sT0}, s{sT0+1}
s_lshl_b32 s{sT0+1}, s{sW}, 13
s_add_u32 s{sT0}, s{sT0}, s{sT0+1}
s_mul_i32 s{sLK}, s{sW}, {LA*8192}
s_add_u32 s{sLK}, s{sLK}, {L_KB}
""")
    a(f"""
v_lshrrev_b32 v{vT}, 5, v{vL}
v_and_b32 v{vT+1}, 31, v{vL}
v_lshlrev_b32 v{vT+2}, 2, v{vT}
v_xor_b32 v{vT+1}, v{vT+1}, v{vT+2}
v_lshlrev_b32 v{vT+1}, 4, v{vT+1}
v_lshl_add_u32 v{vT+1}, v{vT}, 9, v{vT+1}
v_add_u32 v{vT+1}, s{sT0}, v{vT+1}
""")
    for i in range(8):
        k = (8 * (i & 1) + (i >> 1)) * 16
        if i < 4:
            a(f"v_xor_b32 v{vKD+i}, {k}, v{vT+1}" if k else f"v_mov_b32 v{vKD+i}, v{vT+1}")
        else:
            a(f"v_xor_b32 v{vKD+i}, {k + 4096}, v{vT+1}")
    a(f"""
v_and_b32 v{vT}, 15, v{vL}
v_lshrrev_b32 v{vT+2}, 4, v{vL}
v_lshlrev_b32 v{vVO}, 9, v{vT+2}
v_lshl_add_u32 v{vVO}, v{vT}, 4, v{vVO}
v_add_u32 v{vVO}, s{sT0}, v{vVO}
v_add_u32 v{vVO+1}, 4096, v{vVO}
""")
    a(f"""
v_lshrrev_b32 v{vT+3}, 3, v{vT}
s_lshl_b32 s{sT0+1}, s{sKV}, 10
v_lshlrev_b32 v{vT+3}, 9, v{vT+3}
v_lshl_add_u32 v{vT+3}, v{vT+2}, 4, v{vT+3}
v_add_u32 v{vT+3}, s{sT0+1}, v{vT+3}
""")
    for t in range(NT): a(f"s_mov_b32 s{sTO+t}, {t*TSTR}")
    a(f"s_or_b32 s{sDES}, s{sCH}, s{sW}")
    a("s_waitcnt lgkmcnt(0)")
    stamp()
    def issue_K(t):
        slot = t % LA
        a(f"s_add_u32 m0, s{sLK}, {L_K + slot*8192}")
        a("s_nop 0")
        for i in range(4):
            a(f"buffer_load_dwordx4 v{vKD+i}, s[{sK}:{sK+3}], s{sTO+t} offen offset:{i*1024}{lf} lds")
        a(f"s_add_u32 m0, s{sLK}, {L_K + slot*8192 + 4096}")
        a("s_nop 0")
        for i in range(4, 8):
            a(f"buffer_load_dwordx4 v{vKD+i}, s[{sK}:{sK+3}], s{sTO+t} offen offset:{(i-4)*1024}{lf} lds")
    def issue_V(t):
        b = t % LA
        for j in range(8):
            i, hf = j >> 1, j & 1
            a(f"buffer_load_dwordx4 {vr(vV+32*b+4*j,4)}, v{vVO + (i>>1)}, s[{sV}:{sV+3}], s{sTO+t} offen offset:{(i&1)*2048 + hf*256}{lf}")
    issued = []
    def note(name, n): issued.append((name, n))
    def younger(name, j, n):
        idx = [k for k, (nm, _) in enumerate(issued) if nm == name][0]
        return (n - 1 - j) + sum(c for _, c in issued[idx+1:])
    issue_K(0); note("K0", 8)
    for i in range(8):
        a(f"buffer_load_dwordx4 {vr(vQ+4*i,4)}, v{vT+3}, s[{sQ}:{sQ+3}], 0 offen offset:{i*64}")
    note("Q", 8)
    if tree:
        a(f"""
s_mov_b32 s{sKT+2}, 4096
s_mov_b32 s{sKT+3}, 0x20000
s_mov_b32 s{sVT+2}, 4096
s_mov_b32 s{sVT+3}, 0x20000
s_mov_b32 s{sMK+2}, 2
s_mov_b32 s{sMK+3}, 0x20000
s_cmp_lg_u32 s{sDES}, 0
s_cbranch_scc1 L_notree0
s_lshl_b32 s{sT0+1}, s{sKV}, 9
v_lshlrev_b32 v{vT+4}, 4, v{vT+2}
v_lshlrev_b32 v{vT+5}, 4, v{vT}
v_mov_b32 v{vT+6}, 0
""")
        for i in range(8):
            a(f"buffer_load_dwordx4 {vr(vKF+4*i,4)}, v{vT+4}, s[{sKT}:{sKT+3}], s{sT0+1} offen offset:{i*64}")
        for hf in range(2):
            a(f"buffer_load_dwordx4 {vr(vVX+4*hf,4)}, v{vT+5}, s[{sVT}:{sVT+3}], s{sT0+1} offen offset:{hf*256}")
        a(f"buffer_load_ushort v{vT+7}, v{vT+6}, s[{sMK}:{sMK+3}], 0 offen")
        a("L_notree0:")
    issue_V(0); note("V0", 8)
    for t in range(1, LA):
        issue_K(t); note(f"K{t}", 8)
        issue_V(t); note(f"V{t}", 8)
    a(f"""
s_mov_b32 s{sOUT+2}, 8192
s_mov_b32 s{sOUT+3}, 0x20000
s_mov_b32 s{sDBG+2}, 256
s_mov_b32 s{sDBG+3}, 0x20000
s_mov_b32 s{sWS+2}, 0x10000000
s_mov_b32 s{sWS+3}, 0x20000
s_mov_b32 s{sC}, {hexf(C_SCALE)}
""")
    a(f"""
v_and_b32 v{vX0}, 3, v{vT}
v_lshlrev_b32 v{vX0}, 2, v{vX0}
v_lshrrev_b32 v{vX1}, 2, v{vT}
v_add_u32 v{vX0}, v{vX0}, v{vX1}
v_lshlrev_b32 v{vX0}, 9, v{vX0}
v_add_u32 v{vX0}, s{sLK}, v{vX0}
v_xor_b32 v{vX1}, v{vT+2}, v{vT}
v_lshlrev_b32 v{vX1}, 4, v{vX1}
""")
    for u in range(4):
        a(f"v_xor_b32 v{vKR+u}, {u*64}, v{vX1}" if u else f"v_mov_b32 v{vKR}, v{vX1}")
    for u in range(4):
        a(f"v_add_u32 v{vKR+u}, v{vX0}, v{vKR+u}")
    a(f"""
v_and_b32 v{vX1}, 1, v{vL}
v_cmp_eq_u32 vcc, 1, v{vX1}
v_mov_b32 v{vB[0]}, 0xffff
v_mov_b32 v{vB[0]+1}, 0xffff0000
v_bfe_u32 v{vX1}, v{vL}, 1, 2
v_cndmask_b32 v{vB[0]}, v{vB[0]}, v{vB[0]+1}, vcc
""")
    for e in range(4):
        a(f"""
v_cmp_eq_u32 vcc, {e}, v{vX1}
s_nop 1
v_cndmask_b32 v{vM+e}, 0, v{vB[0]}, vcc
""")
    for r in range(4):
        a(f"v_mov_b32 v{vA0+r}, 0"); a(f"v_mov_b32 v{vA1+r}, 0")
    a(f"v_mov_b32 v{vMc}, 0xff800000")
    a(f"v_mov_b32 v{vLs}, 0")
    def build_B(preg, b):
        a(f"v_cvt_pk_bf16_f32 v{vX1}, v{preg}, v{preg}")
        for e in range(4): a(f"v_and_b32 v{vB[b]+e}, v{vX1}, v{vM+e}")
    if tree:
        n = younger("Q", 7, 8)
        a(f"""
s_cmp_lg_u32 s{sDES}, 0
s_cbranch_scc1 L_notree1
s_waitcnt vmcnt({n})
""")
        for i in range(8):
            c = "0" if i == 0 else vr(vS, 4)
            a(f"v_mfma_f32_16x16x32_bf16 {vr(vS,4)}, {vr(vKF+4*i,4)}, {vr(vQ+4*i,4)}, {c}")
        a(f"""
v_lshlrev_b32 v{vT+7}, 16, v{vT+7}
v_sub_f32 v{vT+7}, 1.0, v{vT+7}
s_mov_b32 s{sT0+1}, {hexf(-1.0e9*1.4426950408889634)}
v_cmp_gt_u32 vcc, 16, v{vL}
v_mul_f32 v{vT+7}, s{sT0+1}, v{vT+7}
s_nop 3
v_cndmask_b32 v{vLs}, 0, 1.0, vcc
v_fma_f32 v{vMc}, v{vS}, s{sC}, v{vT+7}
""")
        build_B(vLs, 0)
        a("s_nop 1")
        a(f"v_mfma_f32_16x16x32_bf16 {vr(vA0,4)}, {vr(vVX,4)}, {vr(vB[0],4)}, {vr(vA0,4)}")
        a(f"v_mfma_f32_16x16x32_bf16 {vr(vA1,4)}, {vr(vVX+4,4)}, {vr(vB[0],4)}, {vr(vA1,4)}")
        a("L_notree1:")
    def cross_q(op, r0, r1):
        a(f"""
v_mov_b32 v{r1}, v{r0}
s_nop 1
v_permlane16_swap_b32 v{r0}, v{r1}
{op} v{r0}, v{r0}, v{r1}
v_mov_b32 v{r1}, v{r0}
s_nop 1
v_permlane32_swap_b32 v{r0}, v{r1}
{op} v{r0}, v{r0}, v{r1}
""")
    bi = 0
    for t in range(NT):
        slot = t % LA
        a(f"s_waitcnt vmcnt({min(63, younger(f'K{t}' if t else 'Q', 7, 8))})")
        if t == 0: stamp()
        for s in range(8):
            a(f"ds_read_b128 {vr(vKF+4*s,4)}, v{vKR+(s&3)} offset:{L_K + slot*8192 + (s>>2)*256}")
        for s in range(8):
            a(f"s_waitcnt lgkmcnt({7-s})")
            c = "0" if s == 0 else vr(vS, 4)
            a(f"v_mfma_f32_16x16x32_bf16 {vr(vS,4)}, {vr(vKF+4*s,4)}, {vr(vQ+4*s,4)}, {c}")
        if t + LA < NT:
            issue_K(t + LA); note(f"K{t+LA}", 8)
        else:
            a("s_nop 7")
        a(f"v_max3_f32 v{vX0}, v{vS}, v{vS+1}, v{vS+2}")
        a(f"v_max_f32 v{vX0}, v{vX0}, v{vS+3}")
        cross_q("v_max_f32", vX0, vX1)
        a(f"""
v_mul_f32 v{vX0}, s{sC}, v{vX0}
v_max_f32 v{vX0}, v{vX0}, v{vMc}
v_sub_f32 v{vAl}, v{vMc}, v{vX0}
v_mov_b32 v{vMc}, v{vX0}
v_exp_f32 v{vAl}, v{vAl}
""")
        for r in range(4): a(f"v_fma_f32 v{vS+r}, v{vS+r}, s{sC}, -v{vMc}")
        for r in range(4): a(f"v_exp_f32 v{vS+r}, v{vS+r}")
        for r in range(4):
            a(f"v_mul_f32 v{vA0+r}, v{vA0+r}, v{vAl}"); a(f"v_mul_f32 v{vA1+r}, v{vA1+r}, v{vAl}")
        a(f"v_fma_f32 v{vLs}, v{vLs}, v{vAl}, v{vS}")
        for r in range(1, 4): a(f"v_add_f32 v{vLs}, v{vLs}, v{vS+r}")
        if t == NT - 1:
            cross_q("v_add_f32", vLs, vX1)
            a(f"""
v_bfe_u32 v{vT}, v{vL}, 3, 1
v_lshlrev_b32 v{vT}, {3 + (NW.bit_length()-1)}, v{vT}
s_lshl_b32 s{sT0}, s{sW}, 3
v_add_u32 v{vT}, s{sT0}, v{vT}
s_mov_b64 exec, 0x101
ds_write_b64 v{vT}, v[{vMc}:{vMc+1}] offset:{L_ML}
s_mov_b64 exec, -1
""")
        b = t % LA
        for i in range(4):
            bi ^= 1
            build_B(vS + i, bi)
            a("s_nop 0")
            a(f"s_waitcnt vmcnt({min(63, younger(f'V{t}', 2*i, 8))})")
            a(f"v_mfma_f32_16x16x32_bf16 {vr(vA0,4)}, {vr(vV+32*b+8*i,4)}, {vr(vB[bi],4)}, {vr(vA0,4)}")
            a(f"s_waitcnt vmcnt({min(63, younger(f'V{t}', 2*i+1, 8))})")
            a(f"v_mfma_f32_16x16x32_bf16 {vr(vA1,4)}, {vr(vV+32*b+8*i+4,4)}, {vr(vB[bi],4)}, {vr(vA1,4)}")
        if t + LA < NT:
            issue_V(t + LA); note(f"V{t+LA}", 8)
        if t == NT // 2 - 1: stamp()
    stamp()
    a(f"""
v_lshlrev_b32 v{vT}, 4, v{vL}
s_lshl_b32 s{sT0}, s{sW}, 11
v_add_u32 v{vT}, s{sT0}, v{vT}
s_nop 5
ds_write_b128 v{vT}, {vr(vA0,4)} offset:{L_O}
ds_write_b128 v{vT}, {vr(vA1,4)} offset:{L_O+1024}
s_waitcnt lgkmcnt(0)
s_barrier
""")
    if NW > 4:
        a(f"s_cmp_ge_u32 s{sW}, 4\ns_cbranch_scc1 L_fin")
    a(f"""
s_lshr_b32 s{sT0}, s{sW}, 1
s_and_b32 s{sT0+2}, s{sW}, 1
s_lshl_b32 s{sT0+2}, s{sT0+2}, 10
s_lshl_b32 s{sT0+4}, s{sT0}, 7
s_add_u32 s{sT0+2}, s{sT0+2}, s{sT0+4}
v_lshrrev_b32 v{vT}, 4, v{vL}
v_lshlrev_b32 v{vT}, 8, v{vT}
v_and_b32 v{vT+1}, 3, v{vL}
v_lshl_add_u32 v{vT}, v{vT+1}, 5, v{vT}
v_bfe_u32 v{vT+1}, v{vL}, 2, 2
v_lshl_add_u32 v{vT}, v{vT+1}, 2, v{vT}
v_add_u32 v{vT}, s{sT0+2}, v{vT}
s_lshl_b32 s{sT0+4}, s{sT0}, {3 + (NW.bit_length()-1)}
v_mov_b32 v{vT+1}, s{sT0+4}
""")
    vML = vKF
    for j in range(NW // 2):
        a(f"ds_read_b128 {vr(vML+4*j,4)}, v{vT+1} offset:{L_ML + 16*j}")
    for w in range(NW):
        a(f"ds_read2_b32 v[{vQ+2*w}:{vQ+2*w+1}], v{vT} offset0:{(L_O + w*2048)//4 % 256} offset1:{((L_O + w*2048)//4 % 256) + 4}" if False else
          f"ds_read_b32 v{vQ+2*w}, v{vT} offset:{L_O + w*2048}")
        a(f"ds_read_b32 v{vQ+2*w+1}, v{vT} offset:{L_O + w*2048 + 16}")
    a(f"s_waitcnt lgkmcnt({min(15, 2*NW)})")
    a(f"v_max3_f32 v{vMc}, v{vML}, v{vML+2}, v{vML+4}")
    a(f"v_max_f32 v{vMc}, v{vMc}, v{vML+6}")
    for w in range(4, NW, 2):
        a(f"v_max3_f32 v{vMc}, v{vMc}, v{vML+2*w}, v{vML+2*w+2}")
    for w in range(NW): a(f"v_sub_f32 v{vML+2*w}, v{vML+2*w}, v{vMc}")
    for w in range(NW): a(f"v_exp_f32 v{vML+2*w}, v{vML+2*w}")
    a("s_nop 0")
    a(f"v_mul_f32 v{vMc+1}, v{vML}, v{vML+1}")
    for w in range(1, NW): a(f"v_fma_f32 v{vMc+1}, v{vML+2*w}, v{vML+2*w+1}, v{vMc+1}")
    a("s_waitcnt lgkmcnt(0)")
    a(f"v_mul_f32 v{vQ}, v{vQ}, v{vML}")
    a(f"v_mul_f32 v{vQ+1}, v{vQ+1}, v{vML}")
    for w in range(1, NW):
        a(f"v_fma_f32 v{vQ}, v{vQ+2*w}, v{vML+2*w}, v{vQ}")
        a(f"v_fma_f32 v{vQ+1}, v{vQ+2*w+1}, v{vML+2*w}, v{vQ+1}")
    a(f"""
s_lshl_b32 s{sT0+2}, s{sKV}, 16
s_lshl_b32 s{sT0+4}, s{sW}, 14
s_add_u32 s{sT0+2}, s{sT0+2}, s{sT0+4}
s_lshl_b32 s{sT0+4}, s{sCH}, 9
s_add_u32 s{sT0+4}, s{sT0+2}, s{sT0+4}
v_lshlrev_b32 v{vT}, 3, v{vL}
buffer_store_dwordx2 v[{vQ}:{vQ+1}], v{vT}, s[{sWS}:{sWS+3}], s{sT0+4} offen sc1
s_lshl_b32 s{sT0+5}, s{sKV}, 9
s_lshl_b32 s{sT0+6}, s{sT0}, 8
s_add_u32 s{sT0+5}, s{sT0+5}, s{sT0+6}
s_add_u32 s{sT0+5}, s{sT0+5}, 0x100000
s_lshl_b32 s{sT0+6}, s{sCH}, 3
s_add_u32 s{sT0+6}, s{sT0+5}, s{sT0+6}
v_mov_b32 v{vT+1}, 0
s_and_b32 s{sT0+7}, s{sW}, 1
s_cmp_lg_u32 s{sT0+7}, 0
s_cbranch_scc1 L_nohdr
s_mov_b64 exec, 1
buffer_store_dwordx2 v[{vMc}:{vMc+1}], v{vT+1}, s[{sWS}:{sWS+3}], s{sT0+6} offen sc1
s_mov_b64 exec, -1
L_nohdr:
s_waitcnt vmcnt(0)
s_barrier
""")
    stamp()
    a(f"""
s_cmp_lg_u32 s{sW}, 0
s_cbranch_scc1 L_noatom
s_lshl_b32 s{sT0+7}, s{sKV}, 5
v_mov_b32 v{vT}, 1
v_mov_b32 v{vT+1}, s{sT0+7}
s_mov_b64 exec, 1
buffer_atomic_add v{vT}, v{vT+1}, s[{sDBG}:{sDBG+3}], 0 offen sc0
s_waitcnt vmcnt(0)
v_mov_b32 v{vT+1}, 0
ds_write_b32 v{vT+1}, v{vT} offset:{L_FL}
s_mov_b64 exec, -1
s_waitcnt lgkmcnt(0)
L_noatom:
s_barrier
v_mov_b32 v{vT+1}, 0
ds_read_b32 v{vT}, v{vT+1} offset:{L_FL}
s_waitcnt lgkmcnt(0)
v_readfirstlane_b32 s{sT0+7}, v{vT}
""")
    stamp()
    a(f"""
s_cmp_lg_u32 s{sT0+7}, 31
s_cbranch_scc1 L_fin
""")
    vD = 64
    a(f"""
v_and_b32 v{vT}, 31, v{vL}
v_lshlrev_b32 v{vT}, 4, v{vT}
v_lshrrev_b32 v{vT+1}, 5, v{vL}
v_lshl_add_u32 v{vT}, v{vT+1}, 13, v{vT}
v_add_u32 v{vT+2}, 4096, v{vT}
v_and_b32 v{vT+3}, 15, v{vL}
v_lshl_add_u32 v{vT+3}, v{vT+1}, 4, v{vT+3}
v_lshlrev_b32 v{vT+3}, 3, v{vT+3}
buffer_load_dwordx2 v[{vMc}:{vMc+1}], v{vT+3}, s[{sWS}:{sWS+3}], s{sT0+5} offen sc1
""")
    for k in range(16):
        a(f"buffer_load_dwordx4 {vr(vD+4*k,4)}, v{vT + (2 if k >= 8 else 0)}, s[{sWS}:{sWS+3}], s{sT0+2} offen offset:{(k&7)*512} sc1")
    a(f"s_waitcnt vmcnt(16)\nv_mov_b32 v{vX0}, v{vMc}\ns_nop 1")
    for sh in (8, 4, 2, 1):
        a(f"v_max_f32_dpp v{vX0}, v{vX0}, v{vX0} row_ror:{sh} row_mask:0xf bank_mask:0xf")
        a("s_nop 1")
    a(f"""
v_mov_b32 v{vX1}, v{vX0}
s_nop 1
v_permlane32_swap_b32 v{vX0}, v{vX1}
v_max_f32 v{vX0}, v{vX0}, v{vX1}
v_sub_f32 v{vMc}, v{vMc}, v{vX0}
v_exp_f32 v{vMc}, v{vMc}
s_nop 0
v_mul_f32 v{vX0}, v{vMc}, v{vMc+1}
s_nop 1
""")
    for sh in (8, 4, 2, 1):
        a(f"v_add_f32_dpp v{vX0}, v{vX0}, v{vX0} row_ror:{sh} row_mask:0xf bank_mask:0xf")
        a("s_nop 1")
    a(f"""
v_mov_b32 v{vX1}, v{vX0}
s_nop 1
v_permlane32_swap_b32 v{vX0}, v{vX1}
v_add_f32 v{vX0}, v{vX0}, v{vX1}
v_rcp_f32 v{vX0}, v{vX0}
""")
    for r in range(4): a(f"v_mov_b32 v{vA0+r}, 0")
    for k in range(16):
        a(f"s_waitcnt vmcnt({15-k})")
        for r in range(4):
            a(f"v_fmac_f32_dpp v{vA0+r}, v{vMc}, v{vD+4*k+r} row_newbcast:{k} row_mask:0xf bank_mask:0xf")
    for r in range(4): a(f"v_mov_b32 v{vA1+r}, v{vA0+r}")
    a("s_nop 1")
    for r in range(4): a(f"v_permlane32_swap_b32 v{vA0+r}, v{vA1+r}")
    for r in range(4): a(f"v_add_f32 v{vA0+r}, v{vA0+r}, v{vA1+r}")
    for r in range(4): a(f"v_mul_f32 v{vA0+r}, v{vA0+r}, v{vX0}")
    a(f"""
v_cvt_pk_bf16_f32 v{vA1}, v{vA0}, v{vA0+1}
v_cvt_pk_bf16_f32 v{vA1+1}, v{vA0+2}, v{vA0+3}
s_lshl_b32 s{sT0+2}, s{sKV}, 10
s_lshl_b32 s{sT0+4}, s{sW}, 8
s_add_u32 s{sT0+2}, s{sT0+2}, s{sT0+4}
v_and_b32 v{vT}, 31, v{vL}
v_lshlrev_b32 v{vT}, 3, v{vT}
s_mov_b32 exec_hi, 0
buffer_store_dwordx2 v[{vA1}:{vA1+1}], v{vT}, s[{sOUT}:{sOUT+3}], s{sT0+2} offen
s_mov_b64 exec, -1
""")
    a("L_fin:")
    if stamps:
        stamp()
        n = nst[0]
        a(f"""
s_waitcnt lgkmcnt(0)
s_mul_i32 s{sT0}, s2, {NW}
s_add_u32 s{sT0}, s{sT0}, s{sW}
s_lshl_b32 s{sT0}, s{sT0}, 7
s_add_u32 s{sT0}, s{sT0}, 0x8000000
v_mov_b32 v{vT}, 0
s_mov_b64 exec, 1
""")
        for i in range(n):
            a(f"v_mov_b32 v{vB[0]}, s{sST+2*i}")
            a(f"v_mov_b32 v{vB[0]+1}, s{sST+2*i+1}")
            a(f"buffer_store_dwordx2 v[{vB[0]}:{vB[0]+1}], v{vT}, s[{sWS}:{sWS+3}], s{sT0} offen offset:{8*i}")
            a("s_nop 1")
        a(f"s_getreg_b32 s{sT0+2}, hwreg(HW_REG_XCC_ID)")
        a(f"s_getreg_b32 s{sT0+3}, hwreg(HW_REG_HW_ID)")
        a(f"v_mov_b32 v{vB[0]}, s{sT0+2}"); a(f"v_mov_b32 v{vB[0]+1}, s{sT0+3}")
        a(f"buffer_store_dwordx2 v[{vB[0]}:{vB[0]+1}], v{vT}, s[{sWS}:{sWS+3}], s{sT0} offen offset:120")
        a("s_mov_b64 exec, -1")
    a("L_end:\ns_endpgm")
    out = HDR + f"; @launch grid=(256,1,1) block=({NW*64},1,1) lds={LDS}\n"
    out += f""".amdgcn_target "amdgcn-amd-amdhsa--gfx950"
.text
.globl {KN}
.p2align 8
.type {KN},@function
{KN}:
{a.txt()}
.section .rodata,"a"
.p2align 6
.amdhsa_kernel {KN}
  .amdhsa_next_free_vgpr {nvgpr}
  .amdhsa_next_free_sgpr 96
  .amdhsa_accum_offset {acc_off}
  .amdhsa_group_segment_fixed_size 0
  .amdhsa_kernarg_size 72
  .amdhsa_user_sgpr_count 2
  .amdhsa_user_sgpr_kernarg_segment_ptr 1
  .amdhsa_system_sgpr_workgroup_id_x 1
  .amdhsa_float_denorm_mode_32 3
.end_amdhsa_kernel
"""
    return out
if __name__ == "__main__":
    ap = argparse.ArgumentParser()
    ap.add_argument("-o", required=True)
    ap.add_argument("--nw", type=int, default=4); ap.add_argument("--la", type=int, default=2)
    ap.add_argument("--lf", default="nt"); ap.add_argument("--stamps", action="store_true")
    ap.add_argument("--notree", action="store_true")
    x = ap.parse_args()
    open(x.o, "w").write(gen(x.nw, x.la, x.lf, x.stamps, not x.notree))
```

```python
import sys, argparse
KN = "standalone__tree_speculative_verify_tree_attention_over_candidate_token_tree__decode_kernel"
class A:
    def __init__(s): s.l = []
    def __call__(s, x):
        for ln in x.strip("\n").split("\n"): s.l.append("    " + ln.strip() if not ln.strip().endswith(":") else ln.strip())
    def txt(s): return "\n".join(s.l) + "\n"
def gen(NW=8, NWG=256, depth=32, LF="nt", pat="lin", order="wave", G=1, lds=False, inter=False, xmap="head", vg=None, depth2=0, F=1024, rot=0, gran=1, mixed=0, swz=0, Gs=1):
    a = A()
    ntile = 16384 // (NWG * NW)
    nK = ntile // 2
    sK, sV, sWS = 8, 12, 16
    sR, sW, sOFF, sT, sM = 20, 21, 22, 23, 24
    lf = (" " + LF) if LF else ""
    a(f"""
s_cmp_ge_u32 s2, {NWG}
s_cbranch_scc1 L_end
s_memrealtime s[40:41]
s_load_dwordx2 s[{sK}:{sK+1}], s[0:1], 8
s_load_dwordx2 s[{sV}:{sV+1}], s[0:1], 16
s_load_dwordx2 s[{sWS}:{sWS+1}], s[0:1], 64
v_lshrrev_b32 v1, 6, v0
v_and_b32 v2, 63, v0
s_mov_b32 s{sK+2}, 0x4000000
v_readfirstlane_b32 s{sW}, v1
s_mov_b32 s{sK+3}, 0x20000
s_mov_b32 s{sV+2}, 0x4000000
s_mov_b32 s{sV+3}, 0x20000
s_mov_b32 s{sWS+2}, 0x10000000
s_mov_b32 s{sWS+3}, 0x20000
""")
    if xmap == "head":
        a(f"""
s_and_b32 s{sT}, s2, 7
s_mul_i32 s{sT}, s{sT}, {NWG//8}
s_lshr_b32 s{sR}, s2, 3
s_add_u32 s{sR}, s{sR}, s{sT}
""")
    else:
        a(f"s_mov_b32 s{sR}, s2")
    if order == "wave":
        a(f"s_mul_i32 s{sT}, s{sR}, {NW}\ns_add_u32 s{sT}, s{sT}, s{sW}\ns_mul_i32 s{sOFF}, s{sT}, {nK*8192}")
        toff = lambda t: t * 8192
    elif order == "wg":
        a(f"s_mul_i32 s{sT}, s{sR}, {NW*nK*8192}\ns_mul_i32 s{sOFF}, s{sW}, {G*8192}\ns_add_u32 s{sOFF}, s{sOFF}, s{sT}")
        toff = lambda t: (t // G) * NW * G * 8192 + (t % G) * 8192
    elif order == "glob":
        a(f"s_mul_i32 s{sT}, s{sR}, {NW}\ns_add_u32 s{sT}, s{sT}, s{sW}\ns_mul_i32 s{sOFF}, s{sT}, {G*8192}")
        toff = lambda t: (t // G) * NWG * NW * G * 8192 + (t % G) * 8192
    elif order == "grp":
        a(f"""s_and_b32 s{sT}, s2, 7
s_lshl_b32 s{sOFF}, s{sT}, 23
s_lshr_b32 s{sT}, s2, 3
s_lshr_b32 s30, s{sT}, {Gs.bit_length()-1}
s_mul_i32 s30, s30, {Gs*NW*nK*8192}
s_add_u32 s{sOFF}, s{sOFF}, s30
s_and_b32 s30, s{sT}, {Gs-1}
s_mul_i32 s30, s30, {NW*8192}
s_add_u32 s{sOFF}, s{sOFF}, s30
s_mul_i32 s30, s{sW}, 8192
s_add_u32 s{sOFF}, s{sOFF}, s30""")
        toff = lambda t: t * Gs * NW * 8192
    elif order == "fine":
        a(f"s_mul_i32 s{sT}, s{sR}, {NW*nK*8192}\ns_mul_i32 s{sOFF}, s{sW}, {F}\ns_add_u32 s{sOFF}, s{sOFF}, s{sT}")
        toff = lambda t: t * NW * 8192
    elif order == "head":
        a(f"""s_and_b32 s{sT}, s2, 7
s_lshl_b32 s{sOFF}, s{sT}, 23
s_lshr_b32 s{sT}, s2, 3
s_mul_i32 s{sT}, s{sT}, {NW}
s_add_u32 s{sT}, s{sT}, s{sW}
s_mul_i32 s{sT}, s{sT}, {G*8192}
s_add_u32 s{sOFF}, s{sOFF}, s{sT}""")
        toff = lambda t: (t // G) * (NWG // 8) * NW * G * 8192 + (t % G) * 8192
    if pat == "lin":
        a("v_lshlrev_b32 v3, 4, v2"); lo = lambda i: i * 1024
    elif pat == "vpat":
        a("v_lshrrev_b32 v4, 4, v2\nv_and_b32 v5, 15, v2\nv_lshlrev_b32 v3, 11, v4\nv_lshl_add_u32 v3, v5, 4, v3"); lo = lambda i: (i >> 1) * 512 + (i & 1) * 256
    elif pat == "vpat2":
        a("v_lshrrev_b32 v4, 4, v2\nv_and_b32 v5, 15, v2\nv_lshlrev_b32 v3, 9, v4\nv_lshl_add_u32 v3, v5, 4, v3"); lo = lambda i: (i >> 1) * 2048 + (i & 1) * 256
    elif pat == "kpat":
        a("v_lshrrev_b32 v4, 4, v2\nv_and_b32 v5, 15, v2\nv_lshlrev_b32 v3, 9, v5\nv_lshl_add_u32 v3, v4, 4, v3"); lo = lambda i: i * 64
    if mixed:
        a("v_lshrrev_b32 v6, 4, v2\nv_and_b32 v7, 15, v2\nv_lshlrev_b32 v5, 9, v6\nv_lshl_add_u32 v5, v7, 4, v5")
        a(f"v_add_u32 v5, s{sOFF}, v5\nv_add_u32 v6, 4096, v5")
    if swz:
        a("v_lshrrev_b32 v7, 5, v2\nv_and_b32 v8, 31, v2\nv_lshlrev_b32 v9, 2, v7\nv_xor_b32 v8, v8, v9\nv_lshlrev_b32 v8, 4, v8\nv_lshl_add_u32 v7, v7, 9, v8")
        a(f"v_add_u32 v7, s{sOFF}, v7")
        for i in range(8):
            k = (8 * (i & 1) + (i >> 1)) * 16
            a(f"v_xor_b32 v{8+i}, {k}, v7")
            if i: a(f"v_add_u32 v{8+i}, {i*1024}, v{8+i}")
    a(f"v_add_u32 v3, s{sOFF}, v3")
    a("v_add_u32 v4, 4096, v3")
    if lds:
        a(f"s_mul_i32 s{sM}, s{sW}, {max(depth, depth2)*1024}")
    if rot == 1: a(f"s_lshr_b32 s{sT+11}, s2, 3")
    if rot == 2: a(f"s_lshr_b32 s{sT+11}, s2, 3\ns_add_u32 s{sT+11}, s{sT+11}, s2")
    if rot == 3: a(f"s_lshr_b32 s{sT+11}, s2, 4")
    a("s_waitcnt lgkmcnt(0)")
    a("s_memrealtime s[42:43]")
    seq = []
    if inter:
        for t in range(nK): seq += [("K", t), ("V", t)]
    else:
        seq = [("K", t) for t in range(nK)] + [("V", t) for t in range(nK)]
    def body(depth):
        j = 0
        for kind, t in seq:
            srd = sK if kind == "K" else sV
            a(f"s_mov_b32 s{sT}, {toff(t)}")
            if rot:
                a(f"s_add_u32 s{sT+10}, s{sT+11}, {t}\ns_and_b32 s{sT+10}, s{sT+10}, {nK-1}\ns_mul_i32 s{sT+10}, s{sT+10}, {NW*8192}")
            for i in range(8):
                if gran == 1:
                    if j >= depth: a(f"s_waitcnt vmcnt({depth-1})")
                elif j >= depth and i == 0: a(f"s_waitcnt vmcnt({depth-8})")
                off = lo(i); vreg = 3
                if order == "fine":
                    full = (i*1024//F)*NW*F + (i*1024 % F)
                    if rot:
                        a(f"s_add_u32 s{sT}, s{sT+10}, {full}" if full else f"s_mov_b32 s{sT}, s{sT+10}")
                    else:
                        a(f"s_mov_b32 s{sT}, {toff(t) + full}")
                    off = 0
                if off >= 4096: off -= 4096; vreg = 4
                b = j % depth
                if mixed and kind == "V":
                    ii, hf = i >> 1, i & 1
                    a(f"buffer_load_dwordx4 v[{16+4*b}:{16+4*b+3}], v{5 + (ii>>1)}, s[{srd}:{srd+3}], s{sT} offen offset:{(ii&1)*2048 + hf*256}{lf}")
                elif lds and swz:
                    a(f"s_add_u32 m0, s{sM}, {b*1024 + 8192}")
                    a("s_nop 0")
                    a(f"buffer_load_dwordx4 v{8+i}, s[{srd}:{srd+3}], s{sT} offen{lf} lds")
                elif lds:
                    a(f"s_add_u32 m0, s{sM}, {b*1024 - off + 8192}")
                    a("s_nop 0")
                    a(f"buffer_load_dwordx4 v{vreg}, s[{srd}:{srd+3}], s{sT} offen offset:{off}{lf} lds")
                else:
                    a(f"buffer_load_dwordx4 v[{8+4*b}:{8+4*b+3}], v{vreg}, s[{srd}:{srd+3}], s{sT} offen offset:{off}{lf}")
                j += 1
                if j == 8: a("s_memrealtime s[44:45]")
    if depth2:
        a("s_getreg_b32 s30, hwreg(HW_REG_XCC_ID)\ns_and_b32 s30, s30, 1\ns_cmp_eq_u32 s30, 1\ns_cbranch_scc1 L_odd")
        body(depth)
        a("s_branch L_join\nL_odd:")
        body(depth2)
        a("L_join:")
    else:
        body(depth)
    a("s_waitcnt vmcnt(0)")
    a("s_memrealtime s[46:47]")
    a(f"""
s_waitcnt lgkmcnt(0)
s_mul_i32 s{sT}, s2, {NW}
s_add_u32 s{sT}, s{sT}, s{sW}
s_lshl_b32 s{sT}, s{sT}, 7
s_add_u32 s{sT}, s{sT}, 0x8000000
v_mov_b32 v1, 0
s_mov_b64 exec, 1
""")
    for i in range(4):
        a(f"v_mov_b32 v6, s{40+2*i}\nv_mov_b32 v7, s{41+2*i}\nbuffer_store_dwordx2 v[6:7], v1, s[{sWS}:{sWS+3}], s{sT} offen offset:{8*i}\ns_nop 1")
    a(f"s_getreg_b32 s30, hwreg(HW_REG_XCC_ID)\ns_getreg_b32 s31, hwreg(HW_REG_HW_ID)\nv_mov_b32 v6, s30\nv_mov_b32 v7, s31\nbuffer_store_dwordx2 v[6:7], v1, s[{sWS}:{sWS+3}], s{sT} offen offset:120")
    a("s_mov_b64 exec, -1")
    a("L_end:\ns_endpgm")
    nv = 16 + (0 if (lds and not mixed) else 4 * max(depth, depth2))
    if vg: nv = max(nv, vg)
    ldsz = (NW * max(depth, depth2) * 1024 + 8192) if lds else 0
    acc = min(256, (nv + 3) // 4 * 4)
    assert nv <= 256
    return f"""; @launch grid=({NWG},1,1) block=({NW*64},1,1) lds={ldsz}
.amdgcn_target "amdgcn-amd-amdhsa--gfx950"
.text
.globl {KN}
.p2align 8
.type {KN},@function
{KN}:
{a.txt()}
.section .rodata,"a"
.p2align 6
.amdhsa_kernel {KN}
  .amdhsa_next_free_vgpr {nv}
  .amdhsa_next_free_sgpr 96
  .amdhsa_accum_offset {acc}
  .amdhsa_group_segment_fixed_size 0
  .amdhsa_kernarg_size 72
  .amdhsa_user_sgpr_count 2
  .amdhsa_user_sgpr_kernarg_segment_ptr 1
  .amdhsa_system_sgpr_workgroup_id_x 1
.end_amdhsa_kernel
"""
if __name__ == "__main__":
    import subprocess
    names = []
    for spec in sys.argv[1:]:
        kw = {}
        for kv in spec.split(","):
            k, v = kv.split("=")
            if k in ("NW", "NWG", "depth", "G", "vg", "depth2", "F", "rot", "gran", "mixed", "swz", "Gs"): v = int(v)
            elif k in ("lds", "inter"): v = bool(int(v))
            elif k == "LF": v = v.replace("_", " ")
            kw[k] = v
        name = "st_" + spec.replace("=", "").replace(",", "_")
        open(name + ".s", "w").write(gen(**kw))
        names.append(name + ".s")
    subprocess.check_call(["python3", "build.py"] + names, stdout=subprocess.DEVNULL)
    print(" ".join(n[:-2] + ".co" for n in names))
```
